```python
import torch

def _softmax(x, axis=-1):
    return torch.softmax(x, dim=axis)
def _gelu(x):
    return torch.nn.functional.gelu(x, approximate="tanh")
def _silu(x):
    return torch.nn.functional.silu(x)
def _sigmoid(x):
    return torch.sigmoid(x)
def _layernorm(x, axis=-1, eps=1e-5):
    m = x.mean(dim=axis, keepdim=True)
    v = x.var(dim=axis, keepdim=True, unbiased=False)
    return (x - m) / torch.sqrt(v + eps)
def _scatter_add(tgt, idx, src, axis=0):
    return tgt.clone().index_add_(axis, idx, src)
def _segment_sum(src, seg, n):
    out = torch.zeros((n,) + src.shape[1:], dtype=src.dtype)
    return out.index_add_(0, seg, src)
def _pad(x, pw):
    flat = tuple(v for pair in reversed(pw) for v in pair)
    return torch.nn.functional.pad(x, flat)

kernel_name = 'gated_mix__mha_block__geglu_ffn__prompt'

def setup_inputs():

    _w = (lambda a: (lambda t: t.to(torch.bfloat16) if t.is_floating_point() else t)(torch.as_tensor(a)))
    def _A_setup():
        B, S, D, H = 1, 2048, 640, 32
        return {
            "x": _w((lambda *s: torch.randn(*s, dtype=torch.bfloat16) * 0.05)(B, S, D)),
            "wqkv": _w((lambda *s: torch.randn(*s, dtype=torch.bfloat16) * 0.8)(D, 3 * D)),
            "wo": _w((lambda *s: torch.randn(*s, dtype=torch.bfloat16) * 0.05)(D, D)),
        }
    _A_in = _A_setup()

    def _B_setup():
        B, S, D, F = 1, 2048, 640, 1536
        return {
            "x": _w((lambda *s: torch.randn(*s, dtype=torch.bfloat16) * 0.05)(B, S, D)),
            "w_gate": _w((lambda *s: torch.randn(*s, dtype=torch.bfloat16) * 0.1)(D, F)),
            "w_up": _w((lambda *s: torch.randn(*s, dtype=torch.bfloat16) * 0.1)(D, F)),
            "w_down": _w((lambda *s: torch.randn(*s, dtype=torch.bfloat16) * 0.1)(F, D)),
        }
    _B_in = _B_setup()

    return {
        "A_x": _A_in["x"],
        "A_wqkv": _A_in["wqkv"],
        "A_wo": _A_in["wo"],
        "B_x": _B_in["x"],
        "B_w_gate": _B_in["w_gate"],
        "B_w_up": _B_in["w_up"],
        "B_w_down": _B_in["w_down"],
        "gate_w": _w((lambda *s: torch.randn(*s, dtype=torch.bfloat16) * 0.05)(640) * 16.0),
    }

def reference(A_x, A_wqkv, A_wo, B_x, B_w_gate, B_w_up, B_w_down, gate_w):
    def _A_ref(x, wqkv, wo):
        B, S, D = x.shape
        H = 32
        Dh = D // H
        qkv = (lambda x, *d: x.permute(*d))((x @ wqkv).reshape(B, S, 3, H, Dh), 2, 0, 3, 1, 4)
        q, k, v = qkv[0], qkv[1], qkv[2]
        scores = torch.einsum("bhqd,bhkd->bhqk", q, k) * (Dh ** -0.5)
        p = _softmax(scores, axis=-1)
        o = torch.einsum("bhqk,bhkd->bhqd", p, v)
        return (lambda x, *d: x.permute(*d))(o, 0, 2, 1, 3).reshape(B, S, D) @ wo

    def _B_ref(x, w_gate, w_up, w_down):
        return (_gelu(x @ w_gate) * (x @ w_up)) @ w_down

    x = A_x
    g = _sigmoid((x * gate_w).sum(-1, keepdims=True))
    a = _A_ref(x, A_wqkv, A_wo)
    b = _B_ref(x, B_w_gate, B_w_up, B_w_down)
    return g * a + (1 - g) * b
```

```python
class Asm:
    def __init__(self):
        self.lines = []
        self.uid = 0
    def __call__(self, s):
        for ln in s.strip("\n").split("\n"):
            ln = ln.strip()
            if not ln:
                continue
            if ln.endswith(":") or ln.startswith("."):
                self.lines.append(ln)
            else:
                self.lines.append("    " + ln)
    def label(self, base):
        self.uid += 1
        return f"L_{base}_{self.uid}"
    def text(self):
        return "\n".join(self.lines) + "\n"

def vr(base, n):
    return f"v[{base}:{base+n-1}]" if n > 1 else f"v{base}"
def sr(base, n):
    return f"s[{base}:{base+n-1}]" if n > 1 else f"s{base}"

def mfma16(d, a, b, c=None):
    cs = vr(d, 16) if c is None else ("0" if c == 0 else vr(c, 16))
    return f"v_mfma_f32_32x32x16_bf16 {vr(d,16)}, {vr(a,4)}, {vr(b,4)}, {cs}"
def mfma8(d, a, b, c=None):
    cs = vr(d, 16) if c is None else ("0" if c == 0 else vr(c, 16))
    return f"v_mfma_f32_32x32x8_bf16 {vr(d,16)}, {vr(a,2)}, {vr(b,2)}, {cs}"

def kernel_head(A, name):
    A(f".globl {name}")
    A(".p2align 8")
    A(f".type {name},@function")
    A(f"{name}:")

def kernel_desc(name, vgpr, sgpr=102, accum=None):
    if accum is None:
        accum = (vgpr + 3) // 4 * 4
    return f""".p2align 6
.amdhsa_kernel {name}
  .amdhsa_next_free_vgpr {vgpr}
  .amdhsa_next_free_sgpr {sgpr}
  .amdhsa_accum_offset {accum}
  .amdhsa_group_segment_fixed_size 0
  .amdhsa_kernarg_size 88
  .amdhsa_user_sgpr_count 2
  .amdhsa_user_sgpr_kernarg_segment_ptr 1
  .amdhsa_system_sgpr_workgroup_id_x 1
.end_amdhsa_kernel
"""

def srd(A, d, base, nbytes):
    A(f"s_mov_b32 s{d}, s{base}")
    A(f"s_mov_b32 s{d+1}, s{base+1}")
    A(f"s_mov_b32 s{d+2}, {nbytes}")
    A(f"s_mov_b32 s{d+3}, 0x00020000")

import struct
def f32hex(x):
    return "0x%08x" % struct.unpack("<I", struct.pack("<f", x))[0]
```

```python
import math, sys
from asmlib import *

QOFF = 0
KVOFF = 0x280000
ACTOFF = 0x780000
GOFF = 0x1000000
WSBYTES = 0x1100000
LOG2E = 1.4426950408889634
QSCALE = LOG2E / math.sqrt(20.0)

HEADER = open("gated_mix__mha_block__geglu_ffn__prompt.s.ref").read().split("; Override launch")[0]

def gen_k1(A):
    name = "gemm1_kernel"
    kernel_head(A, name)
    A("""
    s_cmp_ge_u32 s2, 640
    s_cbranch_scc1 L_k1_end
    s_load_dwordx4 s[4:7], s[0:1], 0
    s_load_dwordx4 s[8:11], s[0:1], 32
    s_load_dwordx2 s[12:13], s[0:1], 56
    s_load_dwordx2 s[14:15], s[0:1], 80
    v_and_b32 v1, 63, v0
    v_lshrrev_b32 v2, 6, v0
    s_and_b32 s33, s2, 15
    v_readfirstlane_b32 s36, v2
    s_lshr_b32 s34, s2, 4
    s_waitcnt lgkmcnt(0)
    """)
    srd(A, 16, 4, 2048 * 1280)
    srd(A, 28, 14, WSBYTES)
    x_is_qkv = "s_cmp_lt_u32 s34, 15"
    A(f"""
    {x_is_qkv}
    s_cselect_b32 s20, s6, s8
    s_cselect_b32 s21, s7, s9
    s_mov_b32 s22, {640*3840}
    s_cselect_b32 s22, s22, {640*3072}
    s_mov_b32 s23, 0x00020000
    s_cselect_b32 s24, s6, s10
    s_cselect_b32 s25, s7, s11
    s_mov_b32 s26, s22
    s_mov_b32 s27, 0x00020000
    s_movk_i32 s35, 3840
    s_cselect_b32 s35, s35, 3072
    s_lshl_b32 s37, s34, 8
    s_sub_u32 s38, s34, 15
    s_lshl_b32 s39, s38, 7
    {x_is_qkv}
    s_cselect_b32 s37, s37, s39
    s_cselect_b32 s39, 128, 0
    s_add_u32 s39, s39, s37
    s_cmp_ge_u32 s2, 624
    s_cbranch_scc1 L_k1_gate
    """)
    A("""
    v_lshrrev_b32 v14, 3, v1
    v_and_b32 v15, 7, v1
    v_lshrrev_b32 v24, 4, v1
    s_lshl_b32 s40, s33, 7
    s_lshl_b32 s41, s36, 4
    s_add_u32 s40, s40, s41
    v_add_u32 v25, s40, v14
    s_movk_i32 s41, 1280
    v_mul_lo_u32 v25, v25, s41
    v_xor_b32 v26, v15, v24
    v_lshl_add_u32 v2, v26, 4, v25
    v_xor_b32 v26, 4, v26
    v_lshl_add_u32 v3, v26, 4, v25
    v_add_u32 v3, 10240, v3
    s_lshl_b32 s40, s36, 3
    v_add_u32 v25, s40, v14
    v_mul_lo_u32 v25, v25, s35
    v_and_b32 v26, 1, v24
    v_lshlrev_b32 v26, 2, v26
    v_xor_b32 v26, v26, v15
    v_lshl_add_u32 v4, v26, 4, v25
    v_add_u32 v4, s37, v4
    v_xor_b32 v26, 2, v26
    v_lshl_add_u32 v5, v26, 4, v25
    v_add_u32 v5, s39, v5
    s_mov_b32 s40, 0
    s_mov_b32 s41, 0
    s_lshl_b32 s42, s36, 11
    s_lshl_b32 s43, s36, 10
    s_lshl_b32 s44, s35, 6
    """)
    NS = 4
    def dma(stage):
        slot = (stage % NS) * 32768
        A(f"""
        s_add_u32 m0, s42, {slot}
        s_nop 0
        buffer_load_dwordx4 v2, s[16:19], s40 offen lds
        s_add_u32 m0, s42, {slot + 1024}
        s_nop 0
        buffer_load_dwordx4 v3, s[16:19], s40 offen lds
        s_add_u32 m0, s43, {slot + 16384}
        s_add_u32 s40, s40, 128
        buffer_load_dwordx4 v4, s[20:23], s41 offen lds
        s_add_u32 m0, s43, {slot + 24576}
        s_nop 0
        buffer_load_dwordx4 v5, s[24:27], s41 offen lds
        s_add_u32 s41, s41, s44
        """)
    for st in range(NS - 1):
        dma(st)
    A("""
    s_lshr_b32 s45, s36, 2
    s_lshr_b32 s46, s36, 1
    s_and_b32 s46, s46, 1
    s_and_b32 s47, s36, 1
    v_and_b32 v24, 31, v1
    v_lshrrev_b32 v25, 5, v1
    v_lshrrev_b32 v26, 1, v24
    v_and_b32 v26, 7, v26
    s_lshl_b32 s48, s45, 2
    v_add_u32 v27, s48, v25
    v_xor_b32 v27, v27, v26
    v_lshlrev_b32 v27, 4, v27
    v_lshl_add_u32 v27, v24, 7, v27
    s_lshl_b32 s48, s46, 13
    s_lshl_b32 s49, s45, 12
    s_add_u32 s50, s48, s49
    s_xor_b32 s51, s50, 4096
    v_add_u32 v6, s50, v27
    v_xor_b32 v7, 32, v6
    v_add_u32 v8, s51, v27
    v_xor_b32 v9, 32, v8
    v_add_u32 v10, 0x10000, v6
    v_add_u32 v11, 0x10000, v7
    v_add_u32 v12, 0x10000, v8
    v_add_u32 v13, 0x10000, v9
    v_and_b32 v26, 15, v1
    v_lshrrev_b32 v27, 4, v1
    v_and_b32 v27, 1, v27
    v_lshrrev_b32 v28, 2, v26
    v_lshl_add_u32 v28, v25, 3, v28
    v_lshlrev_b32 v28, 7, v28
    v_lshl_add_u32 v28, v27, 13, v28
    v_and_b32 v29, 3, v26
    v_lshl_add_u32 v28, v29, 3, v28
    v_lshrrev_b32 v29, 3, v26
    v_lshl_add_u32 v29, v29, 1, v27
    s_lshl_b32 s48, s47, 1
    v_xor_b32 v29, s48, v29
    v_lshl_add_u32 v28, v29, 5, v28
    s_lshl_b32 s48, s45, 12
    s_add_u32 s48, s48, 16384
    v_add_u32 v16, s48, v28
    v_xor_b32 v17, 32, v16
    v_add_u32 v18, 0x10000, v16
    v_add_u32 v19, 0x10000, v17
    """)
    XF = lambda u, ks: 32 + (u * 2 + ks) * 4
    WF = lambda c, ks: 48 + (c * 2 + ks) * 4
    ACC = lambda u, c: 64 + (u * 2 + c) * 16
    def mainloop(swap):
        for st in range(10):
            outstanding_after = min(9, st + NS - 2) - st
            A(f"s_waitcnt vmcnt({4 * outstanding_after})")
            A("s_barrier")
            if st + NS - 1 < 10:
                dma(st + NS - 1)
            slot = st % NS
            hi = slot >= 2
            base = (slot % 2) * 32768
            for ks in range(2):
                for u in range(2):
                    A(f"ds_read_b128 {vr(XF(u,ks),4)}, v{(10 if hi else 6) + u*2 + ks} offset:{base}")
                for c in range(2):
                    for t in range(2):
                        A(f"ds_read_b64_tr_b16 {vr(WF(c,ks)+2*t,2)}, v{(18 if hi else 16)+c} offset:{base + ks*2048 + t*512}")
            for ks in range(2):
                A(f"s_waitcnt lgkmcnt({6 if ks == 0 else 0})")
                for u in range(2):
                    for c in range(2):
                        z = 0 if (st == 0 and ks == 0) else None
                        if swap:
                            A(mfma16(ACC(u,c), XF(u,ks), WF(c,ks), z))
                        else:
                            A(mfma16(ACC(u,c), WF(c,ks), XF(u,ks), z))
    A("""
    s_cmp_lt_u32 s34, 10
    s_cbranch_scc1 L_k1_loopT
    s_cmp_lt_u32 s34, 15
    s_cbranch_scc1 L_k1_loopV
L_k1_loopT:
    """)
    mainloop(False)
    A("s_branch L_k1_xchg")
    A("L_k1_loopV:")
    mainloop(True)
    A("L_k1_xchg:")
    A("""
    s_lshl_b32 s48, s36, 13
    s_add_u32 s48, s48, 0x10000
    s_xor_b32 s49, s48, 0x8000
    v_lshlrev_b32 v26, 4, v1
    v_add_u32 v27, s49, v26
    v_add_u32 v26, s48, v26
    s_nop 15
    """)
    for i in range(8):
        A(f"ds_write_b128 v26, {vr(96+4*i,4)} offset:{i*1024}")
    A("s_waitcnt lgkmcnt(0)")
    A("s_barrier")
    for i in range(8):
        A(f"ds_read_b128 {vr(32+4*i,4)}, v27 offset:{i*1024}")
    A("""
    s_lshl_b32 s52, s33, 2
    s_lshl_b32 s48, s46, 1
    s_add_u32 s52, s52, s48
    s_add_u32 s52, s52, s45
    s_waitcnt lgkmcnt(0)
    """)
    for i in range(16):
        A(f"v_pk_add_f32 {vr(64+2*i,2)}, {vr(64+2*i,2)}, {vr(32+2*i,2)}")
    A("""
    s_cmp_ge_u32 s34, 15
    s_cbranch_scc1 L_k1_epi_ffn
    s_cmp_ge_u32 s34, 10
    s_cbranch_scc1 L_k1_epi_v
    """)
    A(f"""
    s_cmp_lt_u32 s34, 5
    s_cselect_b32 s53, {f32hex(QSCALE)}, 1.0
    s_movk_i32 s54, 1280
    s_cselect_b32 s54, s54, 2560
    s_cselect_b32 s55, {QOFF}, {KVOFF}
    s_cselect_b32 s56, 0, 5
    s_sub_u32 s56, s34, s56
    s_lshl_b32 s56, s56, 5
    s_lshl_b32 s48, s47, 3
    s_add_u32 s56, s56, s48
    s_mul_i32 s57, s52, s54
    s_add_u32 s55, s55, s57
    s_lshl_b32 s54, s54, 6
    s_movk_i32 s58, 205
    v_lshlrev_b32 v30, 4, v24
    v_lshlrev_b32 v31, 3, v24
    v_add_u32 v31, 1024, v31
    """)
    for c in range(2):
        for a in range(4):
            gl = (a // 2) * 16 + 4 * c + 2 * (a % 2)
            src = 64 + c * 16 + 4 * a
            A(f"""
            s_add_u32 s48, s56, {gl}
            v_add_u32 v26, s48, v25
            v_mul_u32_u24 v27, s58, v26
            v_lshrrev_b32 v27, 10, v27
            v_mul_u32_u24 v28, 5, v27
            v_sub_u32 v28, v26, v28
            v_lshrrev_b32 v29, 1, v28
            v_lshl_add_u32 v29, v29, 9, v30
            v_and_b32 v26, 1, v28
            v_lshl_add_u32 v29, v26, 3, v29
            v_cmp_eq_u32 vcc, 4, v28
            v_mul_f32 v{src}, s53, v{src}
            v_mul_f32 v{src+1}, s53, v{src+1}
            v_cndmask_b32 v29, v29, v31, vcc
            v_mul_lo_u32 v27, v27, s54
            v_mul_f32 v{src+2}, s53, v{src+2}
            v_mul_f32 v{src+3}, s53, v{src+3}
            v_add_u32 v29, v29, v27
            v_cvt_pk_bf16_f32 v{src}, v{src}, v{src+1}
            v_cvt_pk_bf16_f32 v{src+1}, v{src+2}, v{src+3}
            buffer_store_dwordx2 {vr(src,2)}, v29, s[28:31], s55 offen
            """)
    A("s_branch L_k1_end")
    A(f"""
L_k1_epi_v:
    s_sub_u32 s56, s34, 10
    s_lshl_b32 s56, s56, 7
    s_lshl_b32 s48, s47, 5
    s_add_u32 s56, s56, s48
    s_mul_i32 s55, s52, 2560
    s_add_u32 s55, s55, {KVOFF + 1280}
    s_mov_b32 s54, {64*2560}
    s_movk_i32 s58, 3277
    v_and_b32 v30, 15, v24
    v_lshrrev_b32 v31, 4, v24
    v_lshl_add_u32 v30, v31, 6, v30
    v_mul_u32_u24 v31, 320, v25
    """)
    for c in range(2):
        src = 64 + c * 16
        A(f"""
        s_add_u32 s48, s56, {16*c}
        v_add_u32 v26, s48, v30
        v_mul_u32_u24 v27, s58, v26
        v_lshrrev_b32 v27, 16, v27
        v_mul_u32_u24 v28, 20, v27
        v_sub_u32 v28, v26, v28
        v_lshl_add_u32 v29, v28, 4, v31
        v_mul_lo_u32 v27, v27, s54
        v_add_u32 v29, v29, v27
        """)
        for i in range(8):
            A(f"v_cvt_pk_bf16_f32 v{src+i}, v{src+2*i}, v{src+2*i+1}")
        A(f"buffer_store_dwordx4 {vr(src,4)}, v29, s[28:31], s55 offen")
        A(f"buffer_store_dwordx4 {vr(src+4,4)}, v29, s[28:31], s55 offen offset:640")
    A("s_branch L_k1_end")
    c0 = math.sqrt(2.0 / math.pi)
    k1 = -2.0 * LOG2E * c0
    k2 = k1 * 0.044715
    A(f"""
L_k1_epi_ffn:
    s_mul_i32 s55, s52, 136
    s_lshl_b32 s48, s38, 2
    s_add_u32 s55, s55, s48
    s_lshl_b32 s48, s47, 1
    s_add_u32 s55, s55, s48
    s_lshl_b32 s55, s55, 10
    s_add_u32 s55, s55, {ACTOFF}
    v_lshlrev_b32 v29, 4, v1
    v_mov_b32 v26, {f32hex(k1)}
    v_mov_b32 v27, {f32hex(k1)}
    s_mov_b32 s60, {f32hex(k2)}
    s_mov_b32 s61, {f32hex(k2)}
    """)
    for c in range(2):
        g = 64 + c * 16
        u = g + 8
        t = 32
        for i in range(4):
            A(f"v_pk_mul_f32 {vr(t+2*i,2)}, {vr(g+2*i,2)}, {vr(g+2*i,2)}")
        for i in range(4):
            A(f"v_pk_fma_f32 {vr(t+2*i,2)}, {vr(t+2*i,2)}, s[60:61], v[26:27]")
        for i in range(4):
            A(f"v_pk_mul_f32 {vr(t+2*i,2)}, {vr(t+2*i,2)}, {vr(g+2*i,2)}")
        for i in range(8):
            A(f"v_exp_f32 v{t+i}, v{t+i}")
        for i in range(4):
            A(f"v_pk_mul_f32 {vr(g+2*i,2)}, {vr(g+2*i,2)}, {vr(u+2*i,2)}")
        for i in range(8):
            A(f"v_add_f32 v{t+i}, 1.0, v{t+i}")
        for i in range(8):
            A(f"v_rcp_f32 v{t+i}, v{t+i}")
        A("s_nop 0")
        for i in range(4):
            A(f"v_pk_mul_f32 {vr(g+2*i,2)}, {vr(g+2*i,2)}, {vr(t+2*i,2)}")
        for i in range(4):
            A(f"v_cvt_pk_bf16_f32 v{g+i}, v{g+2*i}, v{g+2*i+1}")
        A(f"buffer_store_dwordx4 {vr(g,4)}, v29, s[28:31], s55 offen offset:{c*1024}")
    A("s_branch L_k1_end")
    A("L_k1_gate:")
    srd(A, 20, 12, 1280)
    A(f"""
    s_sub_u32 s40, s2, 624
    s_lshl_b32 s40, s40, 7
    s_lshl_b32 s41, s36, 4
    s_add_u32 s40, s40, s41
    v_lshrrev_b32 v2, 2, v1
    v_add_u32 v2, s40, v2
    v_and_b32 v3, 3, v1
    v_mul_u32_u24 v3, 320, v3
    s_movk_i32 s41, 1280
    v_mul_lo_u32 v4, v2, s41
    v_add_u32 v4, v4, v3
    v_mov_b32 v5, 0
    """)
    for half in range(2):
        for i in range(10):
            A(f"buffer_load_dwordx4 {vr(16+4*i,4)}, v4, s[16:19], 0 offen offset:{(half*10+i)*16}")
            A(f"buffer_load_dwordx4 {vr(64+4*i,4)}, v3, s[20:23], 0 offen offset:{(half*10+i)*16}")
        A("s_waitcnt vmcnt(0)")
        for i in range(40):
            A(f"v_dot2_f32_bf16 v5, v{16+i}, v{64+i}, v5")
        A("s_nop 4")
    A(f"""
    v_add_f32_dpp v6, v5, v5 quad_perm:[1,0,3,2] row_mask:0xf bank_mask:0xf
    s_nop 1
    v_add_f32_dpp v5, v6, v6 quad_perm:[2,3,0,1] row_mask:0xf bank_mask:0xf
    v_mul_f32 v5, {f32hex(-LOG2E)}, v5
    v_exp_f32 v5, v5
    s_nop 0
    v_add_f32 v5, 1.0, v5
    v_rcp_f32 v5, v5
    v_lshlrev_b32 v2, 2, v2
    v_add_u32 v2, {GOFF}, v2
    buffer_store_dword v5, v2, s[28:31], 0 offen
L_k1_end:
    s_endpgm
    """)
    return kernel_desc(name, 128), f"; @launch kernel={name} grid=(640,1,1) block=(512,1,1) lds=131072"

def gen_k2(A):
    name = "attn_kernel"
    kernel_head(A, name)
    QM = lambda t: 16 + 4 * t
    QR = lambda t: 32 + 2 * t
    KM = lambda b: 40 + 4 * b
    KR = lambda b: 48 + 2 * b
    VF = lambda b, m: 52 + 8 * b + 4 * m
    S = lambda b: 68 + 16 * b
    O = lambda t: 100 + 16 * t
    A(f"""
    s_cmp_ge_u32 s2, 256
    s_cbranch_scc1 L_k2_end
    s_load_dwordx2 s[14:15], s[0:1], 80
    v_and_b32 v1, 63, v0
    v_lshrrev_b32 v2, 6, v0
    s_and_b32 s33, s2, 7
    v_readfirstlane_b32 s36, v2
    s_lshl_b32 s33, s33, 2
    s_lshr_b32 s34, s2, 3
    s_and_b32 s34, s34, 3
    s_add_u32 s33, s33, s34
    s_lshr_b32 s34, s2, 5
    s_and_b32 s37, s36, 3
    s_lshr_b32 s38, s36, 2
    s_mov_b32 s20, -1
    s_mov_b32 s21, 0
    s_mov_b32 s22, 0x000fffff
    s_mov_b32 s23, 0x000fffff
    s_mov_b32 s24, 0
    s_mov_b32 s25, -1
    v_lshlrev_b32 v2, 4, v1
    v_lshlrev_b32 v3, 3, v1
    v_and_b32 v5, 31, v1
    v_lshrrev_b32 v6, 5, v1
    v_mul_u32_u24 v4, 320, v6
    v_lshl_add_u32 v4, v5, 4, v4
    s_waitcnt lgkmcnt(0)
    """)
    srd(A, 28, 14, WSBYTES)
    A(f"""
    s_lshl_b32 s39, s34, 3
    s_lshl_b32 s43, s38, 2
    s_add_u32 s39, s39, s43
    s_mul_i32 s40, s33, {64*2560}
    s_add_u32 s40, s40, {KVOFF}
    s_mul_i32 s41, s37, {16*2560}
    s_add_u32 s41, s41, s40
    s_mov_b32 s42, s41
    s_lshl_b32 s44, s33, 6
    s_add_u32 s44, s44, s39
    """)
    for b in range(2):
        A(f"v_mov_b32 v{KR(b)}, 0x3f803f80")
        A(f"v_mov_b32 v{KR(b)+1}, 0x00003f80")
    A("v_mov_b32 v7, 0x3f803f80")
    A("v_cmp_eq_u32 vcc, 20, v5")
    A("s_nop 1")
    A("v_cndmask_b32 v7, 0, v7, vcc")
    for i in range(16):
        A(f"v_mov_b32 v{VF(0,0)+i}, v7")
    for i in range(8):
        A(f"v_mov_b32 v{QR(0)+i}, 0")
    for u in range(4):
        A(f"""
        s_xor_b32 s43, s37, {u}
        s_add_u32 s43, s43, s44
        s_mul_i32 s{45+u}, s43, 1280
        """)
        if QOFF:
            A(f"s_add_u32 s{45+u}, s{45+u}, {QOFF}")
        A(f"buffer_load_dwordx4 {vr(QM(u),4)}, v2, s[28:31], s{45+u} offen")
    A(f"buffer_load_dwordx4 {vr(KM(1),4)}, v2, s[28:31], s40 offen")
    A("s_mov_b64 exec, s[20:21]")
    for u in range(4):
        A(f"buffer_load_dwordx2 {vr(QR(u),2)}, v3, s[28:31], s{45+u} offen offset:1024")
    A(f"buffer_load_dwordx2 {vr(KR(1),2)}, v3, s[28:31], s40 offen offset:1024")
    A("s_mov_b64 exec, -1")
    def loadK(b):
        return [f"buffer_load_dwordx4 {vr(KM(b),4)}, v2, s[28:31], s41 offen",
                "s_mov_b64 exec, s[20:21]",
                f"buffer_load_dwordx2 {vr(KR(b),2)}, v3, s[28:31], s41 offen offset:1024",
                "s_mov_b64 exec, -1",
                "s_add_u32 s41, s41, 2560"]
    def loadV(b):
        return ["s_mov_b64 exec, s[22:23]",
                f"buffer_load_dwordx4 {vr(VF(b,0),4)}, v4, s[28:31], s42 offen offset:1280",
                f"buffer_load_dwordx4 {vr(VF(b,1),4)}, v4, s[28:31], s42 offen offset:1920",
                "s_mov_b64 exec, -1",
                "s_add_u32 s42, s42, 2560"]
    for x in loadK(0) + loadV(0): A(x)
    A(f"""
    s_add_u32 s43, s39, s37
    s_lshl_b32 s43, s43, 7
    s_add_u32 s43, s43, {GOFF}
    v_lshlrev_b32 v8, 2, v5
    buffer_load_dword v9, v8, s[28:31], s43 offen
    s_waitcnt vmcnt(5)
    """)
    for u in range(4):
        A(mfma16(O(u), KM(1), QM(u), 0))
        A(mfma8(O(u), KR(1), QR(u)))
    A("s_nop 15")
    for u in range(4):
        o = O(u)
        A(f"v_max3_f32 v10, v{o}, v{o+1}, v{o+2}")
        for i in range(3, 15, 2):
            A(f"v_max3_f32 v10, v10, v{o+i}, v{o+i+1}")
        A(f"""
        v_max_f32 v10, v10, v{o+15}
        v_mov_b32 v11, v10
        s_nop 1
        v_permlane32_swap_b32 v10, v11
        s_nop 1
        v_max_f32 v10, v10, v11
        v_sub_f32 v10, 0, v10
        v_cvt_pk_bf16_f32 v10, v10, 0
        s_mov_b64 exec, s[24:25]
        v_mov_b32 v{QR(u)}, v10
        s_mov_b64 exec, -1
        """)
    for x in loadK(1): A(x)
    for i in range(64):
        A(f"v_mov_b32 v{O(0)+i}, 0")
    for i in range(4, 8):
        A(f"v_mov_b32 v{S(1)+i}, 0")
    A("s_waitcnt vmcnt(2)")
    A(mfma16(S(0), KM(0), QM(0), 0))
    A(mfma8(S(0), KR(0), QR(0)))
    A("s_mov_b32 s50, 8")
    A("s_nop 15")
    A(".p2align 6")
    A("L_k2_loop:")
    for it in range(2):
        for t in range(4):
            n = it * 4 + t
            cur, nxt = S(n % 2), S((n + 1) % 2)
            e = [f"v_exp_f32 v{cur+i}, v{cur+i}" for i in range(16)]
            cv = [f"v_cvt_pk_bf16_f32 v{cur+i}, v{cur+2*i}, v{cur+2*i+1}" for i in range(8)]
            vb_prev = it if t > 0 else 1 - it
            pvb = mfma16(O((t - 1) % 4), VF(vb_prev, 1), nxt + 4)
            kb_next = it if t < 3 else 1 - it
            qka = mfma16(nxt, KM(kb_next), QM((t + 1) % 4), 0)
            qkb = mfma8(nxt, KR(kb_next), QR((t + 1) % 4))
            pva = mfma16(O(t), VF(it, 0), cur)
            seq = e[0:2] + [pvb]
            if t == 0:
                seq += loadV(1 - it)
            seq += e[2:6]
            if t == 3:
                seq += ["s_waitcnt vmcnt(4)"]
            seq += [qka] + e[6:8] + cv[0:4] + [qkb]
            if t == 2:
                seq += loadK(it)
            seq += e[8:12]
            if t == 0:
                seq += ["s_waitcnt vmcnt(4)"]
            seq += [pva] + e[12:16] + cv[4:8]
            for x in seq: A(x)
    A("""
    s_sub_u32 s50, s50, 1
    s_cmp_lg_u32 s50, 0
    s_cbranch_scc1 L_k2_loop
    """)
    A(mfma16(O(3), VF(1, 1), S(1) + 4))
    A("s_lshl_b32 s43, s38, 2")
    for u in range(1, 4):
        A(f"""
        s_xor_b32 s44, s37, {u}
        s_add_u32 s44, s44, s43
        s_mul_i32 s44, s44, 9216
        v_add_u32 v{10+u}, s44, v2
        """)
    A("s_mul_i32 s44, s36, 9216")
    A("v_add_u32 v10, s44, v2")
    A("s_nop 15")
    for u in range(1, 4):
        for i in range(3):
            A(f"ds_write_b128 v{10+u}, {vr(O(u)+4*i,4)} offset:{(u-1)*3072 + i*1024}")
    A("s_waitcnt lgkmcnt(0)")
    A("s_barrier")
    for j in range(9):
        A(f"ds_read_b128 {vr(O(1)+4*j,4)}, v10 offset:{j*1024}")
    A("s_waitcnt lgkmcnt(0)")
    for u in range(3):
        for i in range(6):
            A(f"v_pk_add_f32 {vr(O(0)+2*i,2)}, {vr(O(0)+2*i,2)}, {vr(O(1)+12*u+2*i,2)}")
    o = O(0)
    A(f"""
    v_mov_b32 v10, v{o+8}
    v_mov_b32 v11, v{o+8}
    s_nop 1
    v_permlane32_swap_b32 v10, v11
    s_mov_b32 s43, {f32hex(2.0**-30)}
    s_mov_b32 s44, {f32hex(2.0**40)}
    v_cmp_lt_f32 vcc, s43, v11
    v_cmp_gt_f32 s[46:47], s44, v11
    s_and_b64 s[46:47], s[46:47], vcc
    s_cmp_eq_u64 s[46:47], -1
    s_cbranch_scc0 L_k2_slow
L_k2_fin:
    v_rcp_f32 v11, v11
    s_waitcnt vmcnt(0)
    v_mul_f32 v11, v11, v9
    s_add_u32 s43, s39, s37
    s_mul_i32 s43, s43, 136
    s_add_u32 s44, s43, s33
    s_add_u32 s44, s44, 96
    s_lshl_b32 s44, s44, 10
    s_add_u32 s44, s44, {ACTOFF}
    s_lshr_b32 s45, s33, 2
    s_add_u32 s45, s45, s43
    s_add_u32 s45, s45, 128
    s_lshl_b32 s45, s45, 10
    s_add_u32 s45, s45, {ACTOFF}
    s_and_b32 s46, s33, 1
    s_lshl_b32 s46, s46, 9
    s_add_u32 s45, s45, s46
    s_and_b32 s46, s33, 2
    s_lshl_b32 s46, s46, 2
    s_add_u32 s45, s45, s46
    """)
    for i in range(12):
        A(f"v_mul_f32 v{o+i}, v{o+i}, v11")
    for i in range(6):
        A(f"v_cvt_pk_bf16_f32 v{o+i}, v{o+2*i}, v{o+2*i+1}")
    A(f"""
    buffer_store_dwordx4 {vr(o,4)}, v2, s[28:31], s44 offen
    s_mov_b64 exec, s[20:21]
    buffer_store_dwordx2 {vr(o+4,2)}, v2, s[28:31], s45 offen
    s_branch L_k2_end
    """)
    A(f"""
L_k2_slow:
    s_waitcnt vmcnt(0)
    s_mov_b64 exec, s[24:25]
    v_mov_b32 v{QR(0)}, 0
    s_mov_b64 exec, -1
    v_mov_b32 v10, 0xff800000
    s_mov_b32 s41, s40
    s_mov_b32 s50, 64
L_k2_slow1:
    """)
    for x in loadK(0): A(x)
    A("s_waitcnt vmcnt(0)")
    A(mfma16(S(0), KM(0), QM(0), 0))
    A(mfma8(S(0), KR(0), QR(0)))
    A("s_nop 15")
    for i in range(0, 16, 2):
        A(f"v_max3_f32 v10, v10, v{S(0)+i}, v{S(0)+i+1}")
    A(f"""
    s_sub_u32 s50, s50, 1
    s_cmp_lg_u32 s50, 0
    s_cbranch_scc1 L_k2_slow1
    v_mov_b32 v11, v10
    s_nop 1
    v_permlane32_swap_b32 v10, v11
    s_nop 1
    v_max_f32 v10, v10, v11
    v_sub_f32 v10, 0, v10
    v_and_b32 v11, 0xffff0000, v10
    v_sub_f32 v10, v10, v11
    v_and_b32 v12, 0xffff0000, v10
    v_sub_f32 v10, v10, v12
    v_lshrrev_b32 v11, 16, v11
    v_or_b32 v11, v11, v12
    v_lshrrev_b32 v10, 16, v10
    s_mov_b64 exec, s[24:25]
    v_mov_b32 v{QR(0)}, v11
    v_mov_b32 v{QR(0)+1}, v10
    s_mov_b64 exec, -1
    s_mov_b32 s41, s40
    s_mov_b32 s42, s40
    s_mov_b32 s50, 64
    """)
    for i in range(16):
        A(f"v_mov_b32 v{o+i}, 0")
    A("L_k2_slow2:")
    for x in loadK(0) + loadV(0): A(x)
    A("s_waitcnt vmcnt(0)")
    A(mfma16(S(0), KM(0), QM(0), 0))
    A(mfma8(S(0), KR(0), QR(0)))
    A("s_nop 15")
    for i in range(16):
        A(f"v_exp_f32 v{S(0)+i}, v{S(0)+i}")
    A("s_nop 0")
    for i in range(8):
        A(f"v_cvt_pk_bf16_f32 v{S(0)+i}, v{S(0)+2*i}, v{S(0)+2*i+1}")
    A("s_nop 1")
    A(mfma16(o, VF(0, 0), S(0)))
    A(mfma16(o, VF(0, 1), S(0) + 4))
    A(f"""
    s_sub_u32 s50, s50, 1
    s_cmp_lg_u32 s50, 0
    s_cbranch_scc1 L_k2_slow2
    s_nop 15
    v_mov_b32 v10, v{o+8}
    v_mov_b32 v11, v{o+8}
    s_nop 1
    v_permlane32_swap_b32 v10, v11
    s_nop 1
    s_branch L_k2_fin
L_k2_end:
    s_endpgm
    """)
    return kernel_desc(name, 164), f"; @launch kernel={name} grid=(256,1,1) block=(512,1,1) lds=73728"

def gen_k3(A):
    name = "gemm2_kernel"
    kernel_head(A, name)
    NS = 5
    SLOT = 24576
    A(f"""
    s_cmp_ge_u32 s2, 160
    s_cbranch_scc1 L_k3_end
    s_load_dwordx2 s[4:5], s[0:1], 16
    s_load_dwordx2 s[6:7], s[0:1], 48
    s_load_dwordx2 s[8:9], s[0:1], 64
    s_load_dwordx2 s[14:15], s[0:1], 80
    v_and_b32 v1, 63, v0
    v_lshrrev_b32 v2, 6, v0
    s_and_b32 s33, s2, 15
    v_readfirstlane_b32 s36, v2
    s_lshr_b32 s34, s2, 4
    s_and_b32 s37, s36, 3
    s_lshr_b32 s38, s36, 2
    s_waitcnt lgkmcnt(0)
    """)
    srd(A, 16, 4, 640 * 1280)
    srd(A, 20, 6, 1536 * 1280)
    srd(A, 24, 8, 2048 * 1280)
    srd(A, 28, 14, WSBYTES)
    A(f"""
    v_lshlrev_b32 v2, 4, v1
    s_lshr_b32 s40, s36, 1
    s_lshl_b32 s41, s33, 2
    s_add_u32 s40, s40, s41
    s_mul_i32 s40, s40, {136*1024}
    s_and_b32 s41, s36, 1
    s_lshl_b32 s41, s41, 11
    s_add_u32 s40, s40, s41
    s_add_u32 s40, s40, {ACTOFF}
    v_lshrrev_b32 v14, 3, v1
    v_and_b32 v15, 7, v1
    v_lshrrev_b32 v16, 4, v1
    v_and_b32 v16, 1, v16
    v_lshlrev_b32 v16, 2, v16
    v_xor_b32 v16, v16, v15
    v_lshlrev_b32 v16, 4, v16
    s_lshl_b32 s41, s34, 7
    v_add_u32 v16, s41, v16
    s_movk_i32 s45, 1280
    s_lshl_b32 s41, s36, 3
    v_add_u32 v17, s41, v14
    v_mul_lo_u32 v3, v17, s45
    v_add_u32 v3, v3, v16
    s_lshr_b32 s41, s36, 1
    s_mul_i32 s41, s41, 20
    s_and_b32 s42, s36, 1
    s_lshl_b32 s42, s42, 3
    s_add_u32 s41, s41, s42
    v_add_u32 v18, s41, v14
    v_mul_lo_u32 v4, v18, s45
    v_add_u32 v4, v4, v16
    v_lshrrev_b32 v18, 2, v17
    v_mul_u32_u24 v18, 20, v18
    v_and_b32 v19, 3, v17
    v_add3_u32 v18, v18, v19, 16
    v_mul_lo_u32 v5, v18, s45
    v_add_u32 v5, v5, v16
    s_lshl_b32 s42, s36, 11
    s_lshl_b32 s43, s36, 10
    """)
    def dma(stage):
        slot = (stage % NS) * SLOT
        if stage < 24:
            wv, ws_, so = 3, 20, stage * 64 * 1280
        elif stage < 32:
            wv, ws_, so = 4, 16, (stage - 24) * 80 * 1280
        else:
            wv, ws_, so = 5, 16, (stage - 32) * 320 * 1280
        A(f"""
        s_add_u32 m0, s42, {slot}
        s_mov_b32 s41, {so}
        buffer_load_dwordx4 v2, s[28:31], s40 offen lds
        buffer_load_dwordx4 v2, s[28:31], s40 offen offset:1024 lds
        s_add_u32 m0, s43, {slot + 16384}
        s_add_u32 s40, s40, 4096
        buffer_load_dwordx4 v{wv}, s[{ws_}:{ws_+3}], s41 offen lds
        """)
    for st in range(NS - 1):
        dma(st)
    A(f"""
    s_lshl_b32 s41, s37, 12
    v_add_u32 v6, s41, v2
    v_add_u32 v7, {2*SLOT}, v6
    v_add_u32 v8, {4*SLOT}, v6
    v_and_b32 v14, 15, v1
    v_lshrrev_b32 v15, 4, v1
    v_and_b32 v15, 1, v15
    v_lshrrev_b32 v16, 5, v1
    v_lshrrev_b32 v17, 2, v14
    v_lshl_add_u32 v17, v16, 2, v17
    v_lshlrev_b32 v17, 7, v17
    v_and_b32 v18, 1, v14
    s_lshl_b32 s41, s38, 1
    v_add_u32 v18, s41, v18
    v_lshrrev_b32 v19, 3, v14
    v_lshlrev_b32 v19, 1, v19
    v_xor_b32 v18, v18, v19
    v_lshl_add_u32 v17, v18, 5, v17
    v_lshrrev_b32 v18, 1, v14
    v_and_b32 v18, 1, v18
    v_lshl_add_u32 v18, v15, 1, v18
    v_lshl_add_u32 v17, v18, 3, v17
    v_add_u32 v9, 16384, v17
    v_add_u32 v10, {2*SLOT}, v9
    v_add_u32 v11, {4*SLOT}, v9
    v_and_b32 v12, 31, v1
    s_lshl_b32 s41, s33, 2
    s_add_u32 s41, s41, s37
    s_lshl_b32 s41, s41, 5
    v_add_u32 v12, s41, v12
    v_lshlrev_b32 v13, 2, v12
    v_add_u32 v13, {GOFF}, v13
    buffer_load_dword v13, v13, s[28:31], 0 offen
    """)
    ACC = 64
    for st in range(34):
        after = min(33, st + NS - 2) - st
        extra = 1 if st < NS - 1 else 0
        if st < NS - 1:
            A(f"s_waitcnt vmcnt({3*after + 1})")
        else:
            A(f"s_waitcnt vmcnt({3*after})")
        A("s_barrier")
        if st + NS - 1 < 34:
            dma(st + NS - 1)
        slot = st % NS
        base = (slot % 2) * SLOT
        for ks in range(4):
            A(f"ds_read_b128 {vr(32+4*ks,4)}, v{6+slot//2} offset:{base + ks*1024}")
            for t in range(2):
                A(f"ds_read_b64_tr_b16 {vr(48+4*ks+2*t,2)}, v{9+slot//2} offset:{base + ks*2048 + t*1024}")
        if st == 24:
            A("v_sub_f32 v14, 1.0, v13")
            A("s_nop 15")
            for i in range(16):
                A(f"v_mul_f32 v{ACC+i}, v{ACC+i}, v14")
            A("s_nop 1")
        for ks in range(4):
            A(f"s_waitcnt lgkmcnt({9 - 3*ks})")
            A(mfma16(ACC, 48 + 4*ks, 32 + 4*ks, 0 if (st == 0 and ks == 0) else None))
    A(f"""
    s_movk_i32 s45, 1280
    v_mul_lo_u32 v12, v12, s45
    v_lshrrev_b32 v16, 5, v1
    v_lshl_add_u32 v12, v16, 5, v12
    s_lshl_b32 s41, s34, 7
    s_lshl_b32 s42, s38, 6
    s_add_u32 s41, s41, s42
    s_nop 15
    """)
    for i in range(8):
        A(f"v_cvt_pk_bf16_f32 v{ACC+i}, v{ACC+2*i}, v{ACC+2*i+1}")
    A(f"""
    buffer_store_dwordx4 {vr(ACC,4)}, v12, s[24:27], s41 offen
    buffer_store_dwordx4 {vr(ACC+4,4)}, v12, s[24:27], s41 offen offset:16
L_k3_end:
    s_endpgm
    """)
    return kernel_desc(name, 80), f"; @launch kernel={name} grid=(160,1,1) block=(512,1,1) lds={NS*SLOT}"

def main(out):
    A = Asm()
    descs, launches = [], []
    for g in (gen_k1, gen_k2, gen_k3):
        d, l = g(A)
        descs.append(d); launches.append(l)
    txt = HEADER + "\n".join(launches) + "\n" + '.amdgcn_target "amdgcn-amd-amdhsa--gfx950"\n.text\n' + A.text() + '.section .rodata,"a"\n' + "".join(descs)
    open(out, "w").write(txt)

if __name__ == "__main__":
    main(sys.argv[1] if len(sys.argv) > 1 else "gated_mix__mha_block__geglu_ffn__prompt.s")
```

```python
class Asm:
    def __init__(self):
        self.lines = []
        self.uid = 0
    def __call__(self, s):
        for ln in s.strip("\n").split("\n"):
            ln = ln.strip()
            if not ln:
                continue
            if ln.endswith(":") or ln.startswith("."):
                self.lines.append(ln)
            else:
                self.lines.append("    " + ln)
    def label(self, base):
        self.uid += 1
        return f"L_{base}_{self.uid}"
    def text(self):
        return "\n".join(self.lines) + "\n"

def vr(base, n):
    return f"v[{base}:{base+n-1}]" if n > 1 else f"v{base}"
def sr(base, n):
    return f"s[{base}:{base+n-1}]" if n > 1 else f"s{base}"

def mfma16(d, a, b, c=None):
    cs = vr(d, 16) if c is None else ("0" if c == 0 else vr(c, 16))
    return f"v_mfma_f32_32x32x16_bf16 {vr(d,16)}, {vr(a,4)}, {vr(b,4)}, {cs}"
def mfma8(d, a, b, c=None):
    cs = vr(d, 16) if c is None else ("0" if c == 0 else vr(c, 16))
    return f"v_mfma_f32_32x32x8_bf16 {vr(d,16)}, {vr(a,2)}, {vr(b,2)}, {cs}"

def kernel_head(A, name):
    A(f".globl {name}")
    A(".p2align 8")
    A(f".type {name},@function")
    A(f"{name}:")

def kernel_desc(name, vgpr, sgpr=102, accum=None):
    if accum is None:
        accum = (vgpr + 3) // 4 * 4
    return f""".p2align 6
.amdhsa_kernel {name}
  .amdhsa_next_free_vgpr {vgpr}
  .amdhsa_next_free_sgpr {sgpr}
  .amdhsa_accum_offset {accum}
  .amdhsa_group_segment_fixed_size 0
  .amdhsa_kernarg_size 88
  .amdhsa_user_sgpr_count 2
  .amdhsa_user_sgpr_kernarg_segment_ptr 1
  .amdhsa_system_sgpr_workgroup_id_x 1
.end_amdhsa_kernel
"""

def srd(A, d, base, nbytes):
    import common
    off = getattr(common.Cfg, "WSB", 0) << 20 if (d == 28) else 0
    if off:
        A(f"s_add_u32 s{d}, s{base}, {off}")
        A(f"s_addc_u32 s{d+1}, s{base+1}, 0")
    else:
        A(f"s_mov_b32 s{d}, s{base}")
        A(f"s_mov_b32 s{d+1}, s{base+1}")
    A(f"s_mov_b32 s{d+2}, {nbytes}")
    A(f"s_mov_b32 s{d+3}, 0x00020000")

import struct
def f32hex(x):
    return "0x%08x" % struct.unpack("<I", struct.pack("<f", x))[0]
```

```python
import math
QOFF = 0
KVOFF = 0x280000
ACTOFF = 0x780000
HOFF = 0x780000
OOFF = 0xD80000
GOFF = 0x1000000
FOFF = 0x1004000
WSBYTES = 0x1200000
LOG2E = 1.4426950408889634
QSCALE = LOG2E / math.sqrt(20.0)
TOFF = 0x1040000
class Cfg:
    STAMP = False
def stamp(A, i):
    if Cfg.STAMP:
        A(f"s_memrealtime s[{80+2*i}:{81+2*i}]")
def stamp_flush(A, kidx, n, wave_sreg=36, wshift=3):
    if not Cfg.STAMP: return
    A(f"""
    s_mov_b64 exec, -1
    s_waitcnt vmcnt(0) lgkmcnt(0)
    s_memrealtime s[{80+2*n}:{81+2*n}]
    s_waitcnt lgkmcnt(0)
    s_lshl_b32 s79, s2, {wshift}
    s_add_u32 s79, s79, s{wave_sreg}
    s_lshl_b32 s79, s79, 5
    s_add_u32 s79, s79, {TOFF + kidx * 0x30000}
    v_mov_b32 v1, 0
    """)
    for i in range(n + 1):
        A(f"v_mov_b32 v2, s{80+2*i}")
        A(f"buffer_store_dword v2, v1, s[28:31], s79 offen offset:{4*i}")
HEADER = open("gated_mix__mha_block__geglu_ffn__prompt.s.ref").read().split("; Override launch")[0]

def dbgt_init(A, kidx):
    if not getattr(Cfg, "DBGT", 0): return
    A(f"""
    s_load_dwordx2 s[96:97], s[0:1], 72
    s_waitcnt lgkmcnt(0)
    s_add_u32 s96, s96, {512*(1-kidx)}
    s_addc_u32 s97, s97, 0
    s_mov_b32 s98, 256
    s_mov_b32 s99, 0x00020000
    """)
def dbgt(A, idx, inv=False, v=250, wave=None):
    if not getattr(Cfg, "DBGT", 0): return
    L = A.label("dbg")
    if wave is None:
        A(f"v_readfirstlane_b32 s94, v0")
        A(f"s_cmp_lg_u32 s94, 0")
    else:
        A(f"s_cmp_lg_u32 s36, {wave}")
    A(f"""
    s_cbranch_scc1 {L}
    s_memrealtime s[94:95]
    s_waitcnt lgkmcnt(0)
    {"s_not_b32 s94, s94" if inv else ""}
    v_mov_b32 v{v}, s94
    v_mov_b32 v{v+1}, 0
    s_mov_b64 s[94:95], exec
    s_mov_b64 exec, 1
    buffer_atomic_umax v{v}, v{v+1}, s[96:99], 0 offen offset:{4*idx}
    s_mov_b64 exec, s[94:95]
{L}:
    """)
```

```python
import sys, importlib
from asmlib import *
from common import *
def main(out, mods):
    A = Asm()
    descs, launches = [], []
    for m, fn in mods:
        d, l = getattr(importlib.import_module(m), fn)(A)
        descs.append(d); launches.append(l)
    txt = HEADER + "\n".join(launches) + "\n" + '.amdgcn_target "amdgcn-amd-amdhsa--gfx950"\n.text\n' + A.text() + '.section .rodata,"a"\n' + "".join(descs)
    open(out, "w").write(txt)
if __name__ == "__main__":
    import argparse
    ap = argparse.ArgumentParser()
    ap.add_argument("out", nargs="?", default="gated_mix__mha_block__geglu_ffn__prompt.s")
    ap.add_argument("--stamp", action="store_true")
    ap.add_argument("--k", default="k1v2,k2v1,k3v1")
    ap.add_argument("--opt", default="")
    a = ap.parse_args()
    Cfg.STAMP = a.stamp
    for o in a.opt.split(","):
        if o:
            k, v = o.split("=")
            setattr(Cfg, k, int(v))
    ks = a.k.split(",")
    main(a.out, [(ks[i], f"gen_k{i+1}") for i in range(len(ks))])
```
